```python
import torch

def _softmax(x, axis=-1):
    return torch.softmax(x, dim=axis)
def _gelu(x):
    return torch.nn.functional.gelu(x, approximate="tanh")
def _silu(x):
    return torch.nn.functional.silu(x)
def _sigmoid(x):
    return torch.sigmoid(x)
def _layernorm(x, axis=-1, eps=1e-5):
    m = x.mean(dim=axis, keepdim=True)
    v = x.var(dim=axis, keepdim=True, unbiased=False)
    return (x - m) / torch.sqrt(v + eps)
def _scatter_add(tgt, idx, src, axis=0):
    return tgt.clone().index_add_(axis, idx, src)
def _segment_sum(src, seg, n):
    out = torch.zeros((n,) + src.shape[1:], dtype=src.dtype)
    return out.index_add_(0, seg, src)
def _pad(x, pw):
    flat = tuple(v for pair in reversed(pw) for v in pair)
    return torch.nn.functional.pad(x, flat)

kernel_name = 'standalone__dense_activation_squared_relu__prompt'

def setup_inputs():

    _w = (lambda a: (lambda t: t.to(torch.bfloat16) if t.is_floating_point() else t)(torch.as_tensor(a)))
    B, S, D, F = 1, 2048, 1024, 3584
    return {
        "x": _w((lambda *s: torch.randn(*s, dtype=torch.bfloat16) * 0.05)(B, S, D)),
        "w1": _w((lambda *s: torch.randn(*s, dtype=torch.bfloat16) * 0.05)(D, F)),
        "b1": _w((lambda *s: torch.randn(*s, dtype=torch.bfloat16) * 0.05)(F)),
        "w2": _w((lambda *s: torch.randn(*s, dtype=torch.bfloat16) * 0.05)(F, D)),
        "b2": _w((lambda *s: torch.randn(*s, dtype=torch.bfloat16) * 0.05)(D)),
    }

def reference(x, w1, b1, w2, b2):
    h = torch.einsum("bsd,df->bsf", x, w1) + b1
    zero = torch.zeros_like(h)
    r = torch.where(h > zero, h, zero)
    h = r * r
    out = torch.einsum("bsf,fd->bsd", h, w2) + b2
    return out
```

```python
import sys, argparse

HEADER = open('standalone__dense_activation_squared_relu__prompt.s.ref').read().split('; Override')[0]

class Asm:
    def __init__(self): self.l=[]
    def __call__(self, s): self.l.append('    '+s)
    def lab(self, s): self.l.append(s+':')
    def raw(self, s): self.l.append(s)
    def text(self): return '\n'.join(self.l)+'\n'

def vr(b,n=1,p='v'): return f'{p}{b}' if n==1 else f'{p}[{b}:{b+n-1}]'
def ar(b,n=1): return vr(b,n,'a')

def interleave(main, fill, start=0, per=1):
    out=[]; fi=0
    for i,m in enumerate(main):
        out.append(m)
        if i>=start:
            for _ in range(per):
                if fi<len(fill):
                    f=fill[fi]; fi+=1
                    out.extend(f if isinstance(f,list) else [f])
    for f in fill[fi:]: out.extend(f if isinstance(f,list) else [f])
    return out

def stamp(a, o, idx, sreg=90):
    if o.stamp: a(f's_memrealtime s[{sreg+2*idx}:{sreg+2*idx+1}]')

def stamp_out(a, o, n, slot_s, region):
    if not o.stamp: return
    a('s_waitcnt lgkmcnt(0)')
    a('s_mov_b32 s80, s10'); a('s_mov_b32 s81, s11'); a('s_mov_b32 s82, 0x10000000'); a('s_mov_b32 s83, 0x20000')
    a(f's_lshl_b32 s84, {slot_s}, 5'); a(f's_add_u32 s84, s84, {region}')
    a('v_mov_b32 v1, 0')
    for i in range(n):
        a(f'v_mov_b32 v2, s{90+2*i}')
        a(f'buffer_store_dword v2, v1, s[80:83], s84 offen offset:{4*i}')
        a('s_nop 1')

STAMP1=0x8000000; STAMP2=0x8100000

def gemm1(a, o):
    ABASE=0; ASLOT=16384; BBASE=3*ASLOT; BSLOT=28672
    a.raw('.globl gemm1_kernel'); a.raw('.p2align 8'); a.raw('.type gemm1_kernel,@function'); a.lab('gemm1_kernel')
    a('s_cmp_ge_u32 s2, 256'); a('s_cbranch_scc1 g1_end')
    stamp(a,o,0)
    a('s_load_dwordx4 s[4:7], s[0:1], 0'); a('s_load_dwordx2 s[8:9], s[0:1], 16'); a('s_load_dwordx2 s[10:11], s[0:1], 56')
    a('v_lshrrev_b32 v1, 6, v0'); a('v_and_b32 v0, 63, v0')
    a('s_and_b32 s30, s2, 7'); a('s_lshr_b32 s31, s2, 3')
    a('v_readfirstlane_b32 s3, v1')
    a('s_and_b32 s32, s30, 1'); a('s_lshl_b32 s32, s32, 3'); a('s_and_b32 s33, s31, 7'); a('s_add_u32 s32, s32, s33')
    a('s_lshr_b32 s33, s30, 1'); a('s_lshl_b32 s33, s33, 2'); a('s_lshr_b32 s34, s31, 3'); a('s_add_u32 s33, s33, s34')
    a('s_mul_i32 s35, s33, 448')
    a('s_cmp_lt_u32 s3, 4'); a('s_cbranch_scc1 g1_consumer')
    a('s_sub_u32 s36, s3, 4')
    a('s_lshl_b32 s37, s32, 18')
    a('s_lshl_b32 s38, s36, 16')
    a('s_add_u32 s37, s37, s38')
    a('v_lshrrev_b32 v1, 3, v0'); a('v_lshlrev_b32 v1, 11, v1'); a('v_add_u32 v1, s37, v1')
    a('v_and_b32 v2, 7, v0'); a('v_lshrrev_b32 v3, 4, v0'); a('v_xor_b32 v2, v2, v3'); a('v_lshlrev_b32 v2, 4, v2')
    for i in range(4):
        if i&1: a(f'v_xor_b32 v3, 64, v2'); a(f'v_add_u32 v{10+i}, v1, v3')
        else: a(f'v_add_u32 v{10+i}, v1, v2')
        if i: a(f'v_add_u32 v{10+i}, {i*16384}, v{10+i}')
    a('s_mul_i32 s38, s36, 114688')
    a('s_add_u32 s38, s38, s35')
    a('s_movk_i32 s39, 2341'); a('s_movk_i32 s40, 7168')
    for i in range(7):
        a(f'v_add_u32 v1, {64*i}, v0')
        a('v_mul_u32_u24 v2, s39, v1'); a('v_lshrrev_b32 v2, 16, v2')
        a('v_mul_u32_u24 v3, 28, v2'); a('v_sub_u32 v3, v1, v3')
        a('v_lshrrev_b32 v4, 2, v2'); a('v_and_b32 v4, 2, v4'); a('v_xor_b32 v3, v3, v4')
        a('v_lshlrev_b32 v3, 4, v3'); a('v_mad_u32_u24 v3, v2, s40, v3')
        a(f'v_add_u32 v{14+i}, s38, v3')
    a('s_lshl_b32 s41, s36, 12')
    a('s_mul_i32 s42, s36, 7168'); a(f's_add_u32 s42, s42, {BBASE}')
    a('s_waitcnt lgkmcnt(0)')
    a('s_mov_b32 s12, s4'); a('s_mov_b32 s13, s5'); a('s_mov_b32 s14, 0x400000'); a('s_mov_b32 s15, 0x20000')
    a('s_mov_b32 s16, s6'); a('s_mov_b32 s17, s7'); a('s_mov_b32 s18, 0x700000'); a('s_mov_b32 s19, 0x20000')
    a('s_mov_b32 s43, 0'); a('s_mov_b32 s44, 0')
    a('s_mov_b32 s45, s41'); a('s_mov_b32 s46, s42')
    a(f's_add_u32 s47, s41, {3*ASLOT}')
    a('s_mov_b32 s48, 0')
    a.lab('g1_ploop')
    a('s_cmp_lt_u32 s48, 3'); a('s_cbranch_scc1 g1_pissue')
    a('s_waitcnt vmcnt(11)'); a('s_barrier')
    a.lab('g1_pissue')
    for i in range(7):
        a(f's_add_u32 m0, s46, {i*1024}'); a('s_nop 0')
        a(f'buffer_load_dwordx4 v{14+i}, s[16:19], s44 offen lds')
    for i in range(4):
        a(f's_add_u32 m0, s45, {i*1024}'); a('s_nop 0')
        a(f'buffer_load_dwordx4 v{10+i}, s[12:15], s43 offen lds')
    a('s_add_u32 s43, s43, 128'); a('s_add_u32 s44, s44, 458752')
    a(f's_add_u32 s45, s45, {ASLOT}'); a(f's_add_u32 s46, s46, {BSLOT}')
    a('s_cmp_eq_u32 s45, s47'); a('s_cselect_b32 s45, s41, s45'); a('s_cselect_b32 s46, s42, s46')
    a('s_add_u32 s48, s48, 1')
    a('s_cmp_eq_u32 s48, 3'); a('s_cbranch_scc0 g1_pnext')
    a('s_waitcnt vmcnt(22)'); a('s_barrier')
    a.lab('g1_pnext')
    a('s_cmp_lt_u32 s48, 16'); a('s_cbranch_scc1 g1_ploop')
    a('s_waitcnt vmcnt(11)'); a('s_barrier')
    a('s_waitcnt vmcnt(0)'); a('s_barrier')
    a('s_endpgm')
    a.lab('g1_consumer')
    XP,XQ,WP,WQ,ACC = 24,40,56,84,112
    vXb0,vXb1,vWbe,vWbo,vWbs = 4,5,6,7,8
    vXp,vXq,vWe,vWo,vWs = 9,10,11,12,13
    acc=lambda tt,mt: ACC+(tt*4+mt)*4
    a('s_and_b32 s36, s3, 1'); a('s_lshr_b32 s37, s3, 1')
    a('v_and_b32 v1, 15, v0'); a('v_lshrrev_b32 v2, 4, v0')
    a('s_lshl_b32 s38, s37, 8'); a('s_add_u32 s38, s38, s35')
    a('v_lshlrev_b32 v3, 3, v2'); a('v_add_u32 v14, s38, v3')
    a('s_lshl_b32 s38, s37, 5'); a('s_add_u32 s38, s38, s35'); a('s_add_u32 s38, s38, 192')
    a('v_add_u32 v15, s38, v3')
    a('s_waitcnt lgkmcnt(0)')
    a('s_mov_b32 s20, s8'); a('s_mov_b32 s21, s9'); a('s_mov_b32 s22, 7168'); a('s_mov_b32 s23, 0x20000')
    a('s_mov_b32 s24, s10'); a('s_mov_b32 s25, s11'); a('s_mov_b32 s26, 0xe00000'); a('s_mov_b32 s27, 0x20000')
    for tt in range(6): a(f'buffer_load_dwordx2 {vr(WQ+2*tt,2)}, v14, s[20:23], 0 offen offset:{tt*32}')
    a(f'buffer_load_dwordx2 {vr(WQ+12,2)}, v15, s[20:23], 0 offen')
    a('s_lshl_b32 s38, s36, 13')
    a('v_lshrrev_b32 v3, 1, v1'); a('v_xor_b32 v3, v3, v2'); a('v_lshlrev_b32 v3, 4, v3')
    a('v_lshl_add_u32 v3, v1, 7, v3'); a(f'v_add_u32 v{vXb0}, s38, v3'); a(f'v_xor_b32 v{vXb1}, 64, v{vXb0}')
    a('v_lshrrev_b32 v3, 2, v1'); a('v_lshl_add_u32 v3, v2, 3, v3'); a('v_mul_u32_u24 v3, 448, v3')
    a('v_and_b32 v16, 3, v1'); a('v_lshl_add_u32 v3, v16, 3, v3'); a(f'v_add_u32 v3, {BBASE}, v3')
    a('v_and_b32 v16, 1, v2'); a('v_lshlrev_b32 v17, 5, v16')
    a('s_lshl_b32 s38, s37, 8'); a('v_add_u32 v18, s38, v3')
    a(f'v_add_u32 v{vWbe}, v18, v17'); a(f'v_sub_u32 v{vWbo}, v18, v17')
    a('s_add_u32 s38, s37, 6'); a('v_xor_b32 v16, s38, v16'); a(f'v_lshl_add_u32 v{vWbs}, v16, 5, v3')
    for d,s in ((vXp,vXb0),(vXq,vXb1),(vWe,vWbe),(vWo,vWbo),(vWs,vWbs)): a(f'v_mov_b32 v{d}, v{s}')
    a('s_mul_i32 s38, s32, 112'); a('s_mul_i32 s39, s33, 7'); a('s_add_u32 s38, s38, s39')
    a('s_lshl_b32 s38, s38, 13'); a('s_lshl_b32 s39, s36, 12'); a('s_add_u32 s38, s38, s39')
    a('v_lshlrev_b32 v3, 4, v0')
    a('s_lshl_b32 s39, s37, 15'); a('s_add_u32 s39, s39, s38'); a('v_add_u32 v14, s39, v3')
    a('s_lshl_b32 s39, s37, 3'); a('s_add_u32 s39, s39, s38'); a(f's_add_u32 s39, s39, {3*8192}'); a('v_add_u32 v15, s39, v3')
    a('s_mov_b32 s43, 0'); a('s_mov_b32 s44, 0'); a('s_mov_b32 s48, 0')
    a('s_movk_i32 s49, 0x2000'); a('s_movk_i32 s50, 0x4000')
    a('s_waitcnt vmcnt(0)')
    for tt in range(7):
        for r in range(4):
            src=WQ+2*tt+(r>>1)
            if r&1: a(f'v_and_b32 v{acc(tt,0)+r}, 0xffff0000, v{src}')
            else: a(f'v_lshlrev_b32 v{acc(tt,0)+r}, 16, v{src}')
        for mt in range(1,4):
            for r in range(0,4,2): a(f'v_pk_mov_b32 {vr(acc(tt,mt)+r,2)}, {vr(acc(tt,0)+r,2)}, {vr(acc(tt,0)+r,2)} op_sel:[0,1]')
    def reads(X,W,vx,kk):
        L=[]
        def wr(tt):
            for h in range(2):
                base = vWs if tt==6 else (vWo if tt&1 else vWe)
                off=(32*kk+4*h)*448+(0 if tt==6 else tt*32)
                L.append(f'ds_read_b64_tr_b16 {vr(W+4*tt+2*h,2)}, v{base} offset:{off}')
        wr(0)
        for mt in range(4): L.append(f'ds_read_b128 {vr(X+4*mt,4)}, v{vx} offset:{mt*2048}')
        for tt in range(1,7): wr(tt)
        return L
    def mfmas(X,W):
        return [f'v_mfma_f32_16x16x32_bf16 {vr(acc(tt,mt),4)}, {vr(W+4*tt,4)}, {vr(X+4*mt,4)}, {vr(acc(tt,mt),4)}' for tt in range(7) for mt in range(4)]
    a('s_barrier')
    stamp(a,o,1)
    for s in reads(XP,WP,vXp,0): a(s)
    a('s_waitcnt lgkmcnt(0)')
    a.raw('.p2align 3')
    a.lab('g1_cloop')
    upd=[[f's_add_u32 s43, s43, {ASLOT}', f's_add_u32 s44, s44, {BSLOT}'],
         [f's_cmp_eq_u32 s43, {3*ASLOT}','s_cselect_b32 s43, 0, s43','s_cselect_b32 s44, 0, s44'],
         f'v_add_u32 v{vXp}, s43, v{vXb0}', f'v_add_u32 v{vXq}, s43, v{vXb1}',
         f'v_add_u32 v{vWe}, s44, v{vWbe}', f'v_add_u32 v{vWo}, s44, v{vWbo}', f'v_add_u32 v{vWs}, s44, v{vWbs}']
    for s in interleave(mfmas(XP,WP), reads(XQ,WQ,vXq,1)+upd): a(s)
    a('s_waitcnt lgkmcnt(0)'); a('s_barrier')
    for s in interleave(mfmas(XQ,WQ), reads(XP,WP,vXp,0)+[['s_add_u32 s48, s48, 1','s_cmp_lt_u32 s48, 16']]): a(s)
    a('s_waitcnt lgkmcnt(0)')
    a('s_cbranch_scc1 g1_cloop')
    stamp(a,o,2)
    a('s_nop 7')
    T=24; k=0
    def act(dst, s0):
        a(f'v_mul_f32_e64 v{s0}, v{s0}, |v{s0}|'); a(f'v_mul_f32_e64 v{s0+1}, v{s0+1}, |v{s0+1}|')
        a(f'v_cvt_pk_bf16_f32 v{dst}, v{s0}, v{s0+1}'); a(f'v_pk_max_i16 v{dst}, v{dst}, 0')
    so=['0','s49','s50']
    for p in range(3):
        for mt in range(4):
            t=T+4*(k%16); k+=1
            act(t,acc(2*p,mt)); act(t+1,acc(2*p,mt)+2); act(t+2,acc(2*p+1,mt)); act(t+3,acc(2*p+1,mt)+2)
            a(f'buffer_store_dwordx4 {vr(t,4)}, v14, s[24:27], {so[p]} offen offset:{mt*1024} {o.hst}')
    for mt in range(4):
        t=T+4*(k%16); k+=1
        act(t,acc(6,mt)); act(t+1,acc(6,mt)+2)
        a(f'buffer_store_dwordx2 {vr(t,2)}, v15, s[24:27], 0 offen offset:{mt*1024} {o.hst}')
    if o.stamp:
        stamp(a,o,3); a('s_waitcnt vmcnt(0)'); stamp(a,o,4)
        a('s_lshl_b32 s85, s2, 2'); a('s_add_u32 s85, s85, s3')
        stamp_out(a,o,5,'s85',STAMP1)
    a.lab('g1_end')
    a('s_endpgm')

def gemm2(a, o):
    R=4; RED=65536
    ACC=48; BF=[16,32]
    acc=lambda u,nt: ACC+(u*4+nt)*4
    Ar=lambda slot,u: (slot*8+u)*4
    vH=[4,5,6,7]; vW=[8,9,10,11]; vT=[12,13]
    a.raw('.globl gemm2_kernel'); a.raw('.p2align 8'); a.raw('.type gemm2_kernel,@function'); a.lab('gemm2_kernel')
    a('s_cmp_ge_u32 s2, 256'); a('s_cbranch_scc1 g2_end')
    stamp(a,o,0)
    a('s_load_dwordx4 s[4:7], s[0:1], 24'); a('s_load_dwordx2 s[8:9], s[0:1], 40'); a('s_load_dwordx2 s[10:11], s[0:1], 56')
    a('v_lshrrev_b32 v1, 6, v0'); a('v_and_b32 v0, 63, v0')
    a('s_and_b32 s30, s2, 7'); a('s_lshr_b32 s31, s2, 3')
    a('v_readfirstlane_b32 s3, v1')
    a('s_lshr_b32 s32, s30, 1'); a('s_lshl_b32 s32, s32, 2'); a('s_and_b32 s33, s31, 3'); a('s_add_u32 s32, s32, s33')
    a('s_and_b32 s33, s30, 1'); a('s_lshl_b32 s33, s33, 3'); a('s_lshr_b32 s34, s31, 2'); a('s_add_u32 s33, s33, s34')
    a('s_lshl_b32 s35, s33, 7')
    a('v_and_b32 v1, 15, v0'); a('v_lshrrev_b32 v2, 4, v0')
    a('v_lshrrev_b32 v3, 3, v0'); a('v_lshlrev_b32 v3, 11, v3'); a('v_add_u32 v3, s35, v3')
    a('v_and_b32 v14, 1, v2'); a('v_lshlrev_b32 v14, 2, v14'); a('v_and_b32 v15, 7, v0'); a('v_xor_b32 v14, v14, v15')
    a(f'v_lshl_add_u32 v{vW[0]}, v14, 4, v3')
    for q in range(1,4): a(f'v_add_u32 v{vW[q]}, {q*16384}, v{vW[0]}')
    for j in range(4):
        a(f's_add_u32 s36, s3, {j}'); a('s_and_b32 s36, s36, 3'); a('s_lshl_b32 s36, s36, 11')
        a(f'v_lshl_add_u32 v{vH[j]}, v0, 4, s36')
    a('s_mul_i32 s36, s32, 112'); a('s_mul_i32 s37, s3, 28'); a('s_add_u32 s36, s36, s37'); a('s_lshl_b32 s36, s36, 13')
    a('s_mul_i32 s37, s3, 1835008')
    a(f's_lshl_b32 s40, s3, 14')
    a('s_waitcnt lgkmcnt(0)')
    a('s_add_u32 s12, s10, s36'); a('s_addc_u32 s13, s11, 0'); a(f's_mov_b32 s14, {28*8192}'); a('s_mov_b32 s15, 0x20000')
    a('s_add_u32 s16, s4, s37'); a('s_addc_u32 s17, s5, 0'); a(f's_mov_b32 s18, 1835008'); a('s_mov_b32 s19, 0x20000')
    a('s_mov_b32 s43, 0'); a('s_mov_b32 s44, 0')
    def ldB(slot):
        L=[]
        for q in range(4):
            L.append([f's_add_u32 m0, s40, {slot*4096+q*1024}', 's_nop 0',
                      f'buffer_load_dwordx4 v{vW[q]}, s[16:19], s44 offen lds']+(['s_add_u32 s44, s44, 0x10000'] if q==3 else []))
        return L
    def ldA(slot):
        L=[]
        for u in range(8):
            L.append([f'buffer_load_dwordx4 {ar(Ar(slot,u),4)}, v{vH[u>>1]}, s[12:15], s43 offen offset:{(u&1)*1024} {o.hld}']+(['s_add_u32 s43, s43, 0x2000'] if u==7 else []))
        return L
    def flat(L):
        for x in L:
            for s in (x if isinstance(x,list) else [x]): a(s)
    flat(ldB(0)); flat(ldB(1)); flat(ldA(0)); flat(ldB(2)); flat(ldA(1)); flat(ldB(3)); flat(ldA(2))
    a('s_mov_b32 s20, s6'); a('s_mov_b32 s21, s7'); a('s_mov_b32 s22, 2048'); a('s_mov_b32 s23, 0x20000')
    a('s_mov_b32 s24, s8'); a('s_mov_b32 s25, s9'); a('s_mov_b32 s26, 0x400000'); a('s_mov_b32 s27, 0x20000')
    a('v_lshl_add_u32 v3, v2, 4, s35')
    a(f'buffer_load_dwordx4 {vr(BF[1],4)}, v3, s[20:23], 0 offen'); a(f'buffer_load_dwordx4 {vr(BF[1]+4,4)}, v3, s[20:23], 0 offen offset:64')
    a('s_lshl_b32 s36, s32, 18'); a('s_lshl_b32 s37, s3, 16'); a('s_add_u32 s36, s36, s37')
    a('v_lshl_add_u32 v3, v1, 11, v3'); a('v_add_u32 v14, s36, v3')
    a('v_lshrrev_b32 v3, 2, v1'); a('v_lshl_add_u32 v3, v2, 2, v3'); a('v_lshlrev_b32 v3, 7, v3')
    a('v_lshrrev_b32 v15, 3, v1'); a('v_lshlrev_b32 v15, 2, v15'); a('v_and_b32 v1, 3, v1'); a('v_add_u32 v15, v15, v1')
    a('v_lshl_add_u32 v3, v15, 4, v3'); a(f'v_add_u32 v{vT[0]}, s40, v3'); a(f'v_xor_b32 v{vT[1]}, 64, v{vT[0]}')
    for i in range(32,128,2): a(f'v_pk_mov_b32 {vr(ACC+i,2)}, 0, 0')
    def trB(slot,buf):
        return [f'ds_read_b64_tr_b16 {vr(BF[buf]+4*nt+2*h,2)}, v{vT[nt>>1]} offset:{slot*4096+h*2048+(nt&1)*8}' for nt in range(4) for h in range(2)]
    a('s_waitcnt vmcnt(38)')
    flat(trB(0,0))
    a('s_waitcnt vmcnt(0)')
    for nt in range(4):
        for r in range(4):
            src=BF[1]+(nt>>1)*4+(nt&1)*2+(r>>1)
            for u in range(2):
                if r&1: a(f'v_and_b32 v{acc(u,nt)+r}, 0xffff0000, v{src}')
                else: a(f'v_lshlrev_b32 v{acc(u,nt)+r}, 16, v{src}')
    a('s_mov_b32 s48, 0')
    stamp(a,o,1)
    a.raw('.p2align 3')
    a.lab('g2_loop')
    for j in range(4):
        m=[f'v_mfma_f32_16x16x32_bf16 {vr(acc(u,nt),4)}, {vr(BF[j&1]+4*nt,4)}, {ar(Ar(j,u),4)}, {vr(acc(u,nt),4)}' for u in range(8) for nt in range(4)]
        a('s_waitcnt vmcnt(24) lgkmcnt(0)')
        t=trB((j+1)%4,(j+1)&1); lb=ldB(j); la=ldA((j+3)%4)
        fill=[]
        ld=lb+la
        for i in range(12):
            fill.append(ld[i])
            fill.append(t[i] if i<8 else [])
        if j==3: fill.append(['s_add_u32 s48, s48, 1','s_cmp_lt_u32 s48, 7'])
        flat(interleave(m,fill))
    a('s_cbranch_scc1 g2_loop')
    stamp(a,o,2)
    for j in range(1,4):
        a(f's_add_u32 s36, s3, {j}'); a('s_and_b32 s36, s36, 3'); a('s_mul_i32 s36, s36, 24576'); a(f's_add_u32 s36, s36, {RED+(j-1)*8192}')
        a(f'v_lshl_add_u32 v{3+j}, v0, 4, s36')
    a('s_mul_i32 s36, s3, 24576'); a(f's_add_u32 s36, s36, {RED}'); a('v_lshl_add_u32 v7, v0, 4, s36')
    a('s_nop 3')
    for j in range(1,4):
        for i in range(8): a(f'ds_write_b128 v{3+j}, {vr(ACC+(j*8+i)*4,4)} offset:{i*1024}')
    a('s_waitcnt lgkmcnt(0)'); a('s_barrier')
    for i in range(8):
        for j in range(1,4): a(f'ds_read_b128 {vr(ACC+(j*8+i)*4,4)}, v7 offset:{(j-1)*8192+i*1024}')
    a('s_mov_b32 s49, 0x8000')
    for u in range(2):
        for P in range(2):
            for e in range(2):
                i=u*4+2*P+e
                a(f's_waitcnt lgkmcnt({min(15,21-3*i)})')
                for r in range(0,4,2):
                    d=ACC+i*4+r
                    a(f'v_pk_add_f32 {vr(d,2)}, {vr(d,2)}, {vr(d+32,2)}')
                    a(f'v_pk_add_f32 {vr(d+64,2)}, {vr(d+64,2)}, {vr(d+96,2)}')
                for r in range(0,4,2):
                    d=ACC+i*4+r
                    a(f'v_pk_add_f32 {vr(d,2)}, {vr(d,2)}, {vr(d+64,2)}')
                t=16+(u*2+P)*4+2*e
                a(f'v_cvt_pk_bf16_f32 v{t}, v{ACC+i*4}, v{ACC+i*4+1}'); a(f'v_cvt_pk_bf16_f32 v{t+1}, v{ACC+i*4+2}, v{ACC+i*4+3}')
            a(f'buffer_store_dwordx4 {vr(16+(u*2+P)*4,4)}, v14, s[24:27], {"s49" if u else "0"} offen offset:{P*64}')
    if o.stamp:
        stamp(a,o,3); a('s_waitcnt vmcnt(0)'); stamp(a,o,4)
        a('s_lshl_b32 s85, s2, 2'); a('s_add_u32 s85, s85, s3')
        stamp_out(a,o,5,'s85',STAMP2)
    a.lab('g2_end')
    a('s_endpgm')

def desc(a,name,nfv,acco):
    for s in [f'.amdhsa_kernel {name}',f'  .amdhsa_next_free_vgpr {nfv}','  .amdhsa_next_free_sgpr 102',f'  .amdhsa_accum_offset {acco}',
              '  .amdhsa_group_segment_fixed_size 0','  .amdhsa_kernarg_size 64','  .amdhsa_user_sgpr_count 2',
              '  .amdhsa_user_sgpr_kernarg_segment_ptr 1','  .amdhsa_system_sgpr_workgroup_id_x 1','.end_amdhsa_kernel']: a.raw(s)

def main():
    ap=argparse.ArgumentParser()
    ap.add_argument('-o',default='standalone__dense_activation_squared_relu__prompt.s')
    ap.add_argument('--stamp',action='store_true')
    ap.add_argument('--hst',default=''); ap.add_argument('--hld',default='')
    o=ap.parse_args()
    a=Asm()
    a.raw(HEADER.rstrip())
    a.raw('; @launch kernel=gemm1_kernel grid=(256,1,1) block=(512,1,1) lds=135168')
    a.raw('; @launch kernel=gemm2_kernel grid=(256,1,1) block=(256,1,1) lds=163840')
    a.raw('.amdgcn_target "amdgcn-amd-amdhsa--gfx950"'); a.raw('.text')
    gemm1(a,o); gemm2(a,o)
    a.raw('.section .rodata,"a"'); a.raw('.p2align 6')
    desc(a,'gemm1_kernel',224,224); a.raw('.p2align 6'); desc(a,'gemm2_kernel',304,176)
    open(o.o,'w').write(a.text())
main()
```

```python
import sys, argparse
HEADER = open('standalone__dense_activation_squared_relu__prompt.s.ref').read().split('; Override')[0]
KN='standalone__dense_activation_squared_relu__prompt_kernel'
class Asm:
    def __init__(self): self.l=[]
    def __call__(self, *ss):
        for s in ss:
            if isinstance(s,list): self(*s)
            else: self.l.append('    '+s)
    def lab(self, s): self.l.append(s+':')
    def raw(self, s): self.l.append(s)
    def text(self): return '\n'.join(self.l)+'\n'
def vr(b,n=1,p='v'): return f'{p}{b}' if n==1 else f'{p}[{b}:{b+n-1}]'
def interleave(main, fill, start=0):
    out=[]; fi=0
    for i,m in enumerate(main):
        out.append(m)
        if i>=start and fi<len(fill): out.append(fill[fi]); fi+=1
    out.extend(fill[fi:])
    return out
def srd(a,d,b,size,add=None):
    if add is None: a(f's_mov_b32 s{d}, s{b}', f's_mov_b32 s{d+1}, s{b+1}')
    else: a(f's_add_u32 s{d}, s{b}, {add}', f's_addc_u32 s{d+1}, s{b+1}, 0')
    a(f's_mov_b32 s{d+2}, {size}', f's_mov_b32 s{d+3}, 0x20000')
X_,W1_,B1_,W2_,B2_,OUT_,DBG_,WS_=4,6,8,10,12,14,16,18
NST=12
def gen(o):
    a=Asm()
    def stamp(i):
        if o.stamp: a(f's_memrealtime s[{64+2*i}:{65+2*i}]')
    def cyc(i):
        if o.stamp: a(f's_memtime s[{64+2*i}:{65+2*i}]')
    def stamp_out(region):
        if not o.stamp: return
        a('s_waitcnt lgkmcnt(0)')
        srd(a,92,WS_,'0x10000000')
        a('s_lshl_b32 s96, s2, 2','s_and_b32 s97, s3, 3','s_add_u32 s96, s96, s97','s_lshl_b32 s96, s96, 6',f's_add_u32 s96, s96, {region}','v_mov_b32 v1, 0')
        for i in range(NST): a(f'v_mov_b32 v2, s{64+2*i}', f'buffer_store_dword v2, v1, s[92:95], s96 offen offset:{4*i}', 's_nop 1')
    SLOT=45056; BOFF=16384; WR=98304
    a.raw(HEADER.rstrip())
    a.raw('; @launch grid=(256,1,1) block=(512,1,1) lds=163840')
    a.raw('.amdgcn_target "amdgcn-amd-amdhsa--gfx950"'); a.raw('.text')
    a.raw(f'.globl {KN}'); a.raw('.p2align 8'); a.raw(f'.type {KN},@function'); a.lab(KN)
    a('s_cmp_ge_u32 s2, 256','s_cbranch_scc1 L_end')
    a('s_load_dwordx16 s[4:19], s[0:1], 0')
    stamp(0)
    a('v_lshrrev_b32 v1, 6, v0','v_and_b32 v0, 63, v0','s_and_b32 s44, s2, 7','s_lshr_b32 s45, s2, 3','v_readfirstlane_b32 s3, v1')
    a('s_and_b32 s40, s44, 1','s_lshl_b32 s40, s40, 3','s_and_b32 s46, s45, 7','s_add_u32 s40, s40, s46')
    a('s_lshr_b32 s41, s44, 1','s_lshl_b32 s41, s41, 2','s_lshr_b32 s46, s45, 3','s_add_u32 s41, s41, s46')
    a('s_lshr_b32 s42, s41, 3','s_and_b32 s43, s41, 7','s_mul_i32 s47, s41, 448')
    a('s_cmp_lt_u32 s3, 4','s_cbranch_scc1 L_cons')
    a('s_sub_u32 s48, s3, 4')
    a('s_movk_i32 s50, 2341','s_movk_i32 s51, 7168','s_mul_i32 s49, s48, 114688','s_add_u32 s49, s49, s47')
    for i in range(7):
        a(f'v_add_u32 v1, {64*i}, v0','v_mul_u32_u24 v2, s50, v1','v_lshrrev_b32 v2, 16, v2')
        a('v_mul_u32_u24 v3, 28, v2','v_sub_u32 v3, v1, v3','v_lshrrev_b32 v4, 2, v2','v_and_b32 v4, 2, v4','v_xor_b32 v3, v3, v4')
        a('v_lshlrev_b32 v3, 4, v3','v_mad_u32_u24 v3, v2, s51, v3',f'v_add_u32 v{14+i}, s49, v3')
    a('s_lshl_b32 s49, s40, 18','s_lshl_b32 s50, s48, 16','s_add_u32 s49, s49, s50')
    a('v_lshrrev_b32 v5, 3, v0','v_lshlrev_b32 v5, 11, v5','v_add_u32 v1, s49, v5')
    a('v_and_b32 v6, 7, v0','v_lshrrev_b32 v7, 4, v0','v_xor_b32 v2, v6, v7','v_lshlrev_b32 v2, 4, v2')
    for i in range(4):
        if i&1: a('v_xor_b32 v3, 64, v2',f'v_add_u32 v{10+i}, v1, v3')
        else: a(f'v_add_u32 v{10+i}, v1, v2')
        if i: a(f'v_add_u32 v{10+i}, {i*16384}, v{10+i}')
    a('s_lshr_b32 s52, s41, 2','s_lshr_b32 s53, s40, 3','s_lshl_b32 s53, s53, 1','s_add_u32 s52, s52, s53')
    a('s_and_b32 s53, s40, 1','s_add_u32 s52, s52, s53','s_and_b32 s52, s52, 3')
    a(f's_mul_i32 s53, s52, {458752*4}','s_lshl_b32 s52, s52, 9')
    a('s_lshl_b32 s54, s48, 12','s_mul_i32 s55, s48, 7168',f's_add_u32 s55, s55, {BOFF}')
    a(f's_mov_b32 s56, {SLOT}','s_mov_b32 s57, 0')
    a('s_mul_i32 s58, s42, 1792','s_mul_i32 s59, s40, 112','s_add_u32 s58, s58, s59','s_and_b32 s59, s41, 3','s_mul_i32 s59, s59, 28','s_add_u32 s58, s58, s59')
    a('s_mul_i32 s59, s48, 7','s_add_u32 s58, s58, s59','s_lshl_b32 s58, s58, 11','s_and_b32 s59, s41, 4','s_lshl_b32 s59, s59, 8','s_add_u32 s58, s58, s59')
    a('s_waitcnt lgkmcnt(0)')
    srd(a,20,X_,'0x400000'); srd(a,24,W1_,'0x700000')
    a(f's_add_u32 s58, s{W2_}, s58',f's_addc_u32 s59, s{W2_+1}, 0','s_movk_i32 s60, 512')
    a.lab('P_loop')
    a('s_cmp_lt_u32 s57, 3','s_cbranch_scc1 P_issue','s_waitcnt vmcnt(11)','s_barrier')
    a.lab('P_issue')
    a('s_add_u32 s61, s56, s55','s_add_u32 s62, s56, s54')
    for i in range(7): a(f's_add_u32 m0, s61, {i*1024}','s_nop 0',f'buffer_load_dwordx4 v{14+i}, s[24:27], s53 offen lds')
    for i in range(4): a(f's_add_u32 m0, s62, {i*1024}','s_nop 0',f'buffer_load_dwordx4 v{10+i}, s[20:23], s52 offen lds')
    a('s_add_u32 s52, s52, 128','s_add_u32 s53, s53, 458752','s_cmp_eq_u32 s52, 2048','s_cselect_b32 s52, 0, s52','s_cselect_b32 s53, 0, s53')
    a(f's_add_u32 s56, s56, {SLOT}',f's_cmp_eq_u32 s56, {3*SLOT}','s_cselect_b32 s56, 0, s56')
    a('s_add_u32 s57, s57, 1','s_cmp_lt_u32 s57, 2','s_cbranch_scc1 P_loop')
    a('s_cmp_eq_u32 s57, 2','s_cbranch_scc0 P_pf','s_waitcnt vmcnt(11)','s_barrier','s_branch P_loop')
    a.lab('P_pf')
    if not o.nopf:
        for i in range(8): a(f's_load_dword s63, s[58:59], {i*64}')
        a('s_add_u32 s58, s58, s60','s_addc_u32 s59, s59, 0','s_xor_b32 s60, s60, 1024')
    a('s_cmp_lt_u32 s57, 16','s_cbranch_scc1 P_loop')
    a('s_lshr_b32 s49, s48, 1','s_and_b32 s50, s48, 1')
    a('s_mul_i32 s51, s42, 3670016'); srd(a,28,W2_,3670016,'s51')
    a('s_mul_i32 s51, s40, 112','s_mul_i32 s52, s42, 56','s_add_u32 s51, s51, s52','s_lshl_b32 s51, s51, 13'); srd(a,32,WS_,56*8192,'s51')
    srd(a,36,DBG_,260)
    a('s_lshl_b32 s51, s43, 8','s_lshl_b32 s52, s50, 7','s_add_u32 s51, s51, s52')
    a('v_lshlrev_b32 v7, 1, v7','v_xor_b32 v2, v6, v7','v_lshl_add_u32 v2, v2, 4, v5','v_add_u32 v21, s51, v2')
    for q in range(1,4): a(f'v_add_u32 v{21+q}, {q*16384}, v21')
    a('s_lshl_b32 s54, s50, 12','v_lshl_add_u32 v25, v0, 4, s54')
    a('s_mul_i32 s55, s43, 7')
    def ldW(mreg):
        for q in range(4): a(f's_add_u32 m0, {mreg}, {WR+q*1024}','s_nop 0',f'buffer_load_dwordx4 v{21+q}, s[28:31], s53 offen lds')
    def ldH(mreg):
        a(f's_mov_b32 m0, {mreg}','s_nop 0')
        for q in range(4): a(f'buffer_load_dwordx4 v25, s[32:35], s52 offen offset:{q*1024} {o.hld} lds')
    def slotT(ireg):
        a(f's_add_u32 s61, {ireg}, 7','s_and_b32 s61, s61, 7','s_lshl_b32 s61, s61, 13','s_add_u32 s61, s61, s54')
        a(f's_cmp_ge_u32 {ireg}, s55','s_cselect_b32 s52, 7, 0',f's_add_u32 s52, s52, {ireg}','s_lshl_b32 s53, s52, 16','s_lshl_b32 s52, s52, 13')
    a('s_waitcnt vmcnt(11)','s_barrier')
    a('s_xor_b32 s57, s49, 1')
    a.lab('P_w0')
    a('s_lshl_b32 s61, s57, 13','s_add_u32 s61, s61, s54','s_add_u32 s53, s57, s55','s_cmp_eq_u32 s57, 7','s_cselect_b32 s53, 56, s53','s_lshl_b32 s53, s53, 16')
    ldW('s61')
    a('s_add_u32 s57, s57, 2','s_cmp_lt_u32 s57, 8','s_cbranch_scc1 P_w0')
    a('s_waitcnt vmcnt(16)','s_barrier','s_barrier')
    srd(a,44,WS_,'0x40000','0x1600000')
    a('s_lshl_b32 s51, s40, 4','v_mov_b32 v29, s51','s_add_u32 s56, s51, s41','s_lshl_b32 s56, s56, 10','v_lshl_add_u32 v27, v0, 3, s56')
    a('s_lshl_b32 s56, s42, 3','s_add_u32 s51, s51, s56','s_lshl_b32 s51, s51, 10','s_lshl_b32 s56, s43, 3','s_add_u32 s51, s51, s56','v_lshl_add_u32 v26, v0, 10, s51')
    a('s_mov_b32 s60, 0x100000')
    a.lab('P_nonce')
    a('buffer_load_dwordx2 v[32:33], v29, s[36:39], 0 offen sc1','s_waitcnt vmcnt(0)','v_readfirstlane_b32 s62, v32')
    a('s_sub_u32 s60, s60, 1','s_cbranch_scc1 P_n2','s_cmp_eq_u32 s62, 0','s_cbranch_scc1 P_nonce')
    a.lab('P_n2')
    a('s_waitcnt vmcnt(0) lgkmcnt(0)'); stamp(1); a('s_barrier')
    a('s_barrier','s_barrier','s_barrier')
    stamp(2)
    a('s_cmp_eq_u32 s48, 0','s_cbranch_scc0 P_noflag','s_mov_b64 exec, 0xff','buffer_store_dwordx2 v[32:33], v26, s[44:47], 0 offen sc1','s_mov_b64 exec, -1')
    a.lab('P_noflag')
    a('s_mov_b32 s57, s49')
    a.lab('P_w1')
    slotT('s57'); ldW('s61')
    a('s_add_u32 s57, s57, 2','s_cmp_lt_u32 s57, 6','s_cbranch_scc1 P_w1')
    a('s_mov_b64 exec, 0xff','s_mov_b32 s60, 0x100000')
    a.lab('P_poll')
    a('s_sub_u32 s60, s60, 1','s_cbranch_scc1 P_go')
    a('buffer_load_dwordx2 v[30:31], v27, s[44:47], 0 offen sc1','s_waitcnt vmcnt(0)')
    a('v_cmp_eq_u64 vcc, v[30:31], v[32:33]','s_nop 1','s_cmp_eq_u32 vcc_lo, 0xff','s_cbranch_scc0 P_poll')
    a.lab('P_go')
    a('s_mov_b64 exec, -1')
    stamp(3)
    a('s_mov_b32 s57, s49')
    a.lab('P_h1')
    slotT('s57'); ldH('s61')
    a('s_add_u32 s57, s57, 2','s_cmp_lt_u32 s57, 6','s_cbranch_scc1 P_h1')
    a('s_waitcnt vmcnt(8)'); stamp(4); a('s_barrier')
    slotT('s57'); ldH('s61'); ldW('s61'); a('s_add_u32 s57, s57, 2')
    a('s_waitcnt vmcnt(12)','s_barrier')
    a.lab('P_g2')
    slotT('s57'); ldH('s61'); ldW('s61')
    a('s_add_u32 s57, s57, 2','s_cmp_lt_u32 s57, 54','s_waitcnt vmcnt(16)','s_barrier','s_cbranch_scc1 P_g2')
    a('s_waitcnt vmcnt(0) lgkmcnt(0)')
    stamp_out(0x8100000)
    a('s_endpgm')
    a.lab('L_cons')
    XP,XQ,WP,WQ,ACC,B2R = 24,40,56,84,112,224
    vXb0,vXb1,vWbe,vWbo,vWbs = 4,5,6,7,8
    vXp,vXq,vWe,vWo,vWs = 9,10,11,12,13
    vHs,vHs2,vLs,vLs2=14,15,19,20
    acc=lambda tt,mt: ACC+(tt*4+mt)*4
    a('s_and_b32 s48, s3, 1','s_lshr_b32 s49, s3, 1')
    a('v_and_b32 v1, 15, v0','v_lshrrev_b32 v2, 4, v0')
    a('s_lshl_b32 s50, s49, 8','s_add_u32 s50, s50, s47','v_lshlrev_b32 v3, 3, v2','v_add_u32 v14, s50, v3')
    a('s_lshl_b32 s50, s49, 5','s_add_u32 s50, s50, s47','s_add_u32 s50, s50, 192','v_add_u32 v15, s50, v3')
    a('s_lshl_b32 s50, s43, 8','s_lshl_b32 s51, s49, 7','s_add_u32 s58, s50, s51','v_add_u32 v16, s58, v3')
    a('s_waitcnt lgkmcnt(0)')
    srd(a,20,B1_,7168); srd(a,28,B2_,2048)
    for tt in range(6): a(f'buffer_load_dwordx2 {vr(WQ+2*tt,2)}, v14, s[20:23], 0 offen offset:{tt*32}')
    a(f'buffer_load_dwordx2 {vr(WQ+12,2)}, v15, s[20:23], 0 offen')
    for nt in range(4): a(f'buffer_load_dwordx2 {vr(B2R+2*nt,2)}, v16, s[28:31], 0 offen offset:{nt*32}')
    srd(a,24,WS_,'0x1600000'); srd(a,32,OUT_,'0x400000'); srd(a,36,DBG_,260)
    a('s_lshl_b32 s50, s40, 4',f'v_mov_b32 v243, s50','s_or_b32 s50, s41, s3','s_cmp_eq_u32 s50, 0','s_cbranch_scc0 C_nn')
    a('s_memrealtime s[50:51]','s_waitcnt lgkmcnt(0)','s_or_b32 s50, s50, 1','v_mov_b32 v244, s50','v_mov_b32 v245, s51','s_mov_b64 exec, 1')
    a('buffer_store_dwordx2 v[244:245], v243, s[36:39], 0 offen sc1','s_mov_b64 exec, -1')
    a.lab('C_nn')
    srd(a,44,WS_,'0x40000','0x1600000')
    a('s_lshl_b32 s50, s48, 13')
    a('v_lshrrev_b32 v3, 1, v1','v_xor_b32 v3, v3, v2','v_lshlrev_b32 v3, 4, v3')
    a('v_lshl_add_u32 v3, v1, 7, v3',f'v_add_u32 v{vXb0}, s50, v3',f'v_xor_b32 v{vXb1}, 64, v{vXb0}')
    a('v_lshrrev_b32 v3, 2, v1','v_lshl_add_u32 v3, v2, 3, v3','v_mul_u32_u24 v3, 448, v3')
    a('v_and_b32 v16, 3, v1','v_lshl_add_u32 v3, v16, 3, v3',f'v_add_u32 v3, {BOFF}, v3')
    a('v_and_b32 v16, 1, v2','v_lshlrev_b32 v17, 5, v16','s_lshl_b32 s50, s49, 8','v_add_u32 v18, s50, v3')
    a(f'v_add_u32 v{vWbe}, v18, v17',f'v_sub_u32 v{vWbo}, v18, v17')
    a('s_add_u32 s50, s49, 6','v_xor_b32 v16, s50, v16',f'v_lshl_add_u32 v{vWbs}, v16, 5, v3')
    a(f's_mov_b32 s52, {SLOT}')
    for d,s in ((vXp,vXb0),(vXq,vXb1),(vWe,vWbe),(vWo,vWbo),(vWs,vWbs)): a(f'v_add_u32 v{d}, s52, v{s}')
    a('s_mul_i32 s50, s40, 112','s_mul_i32 s51, s41, 7','s_add_u32 s50, s50, s51','s_lshl_b32 s50, s50, 13')
    a('s_lshl_b32 s51, s48, 12','v_lshl_add_u32 v3, v0, 4, s51')
    a('s_lshl_b32 s51, s49, 15',f'v_add_u32 v{vLs}, s51, v3',f'v_add_u32 v{vHs}, s50, v{vLs}')
    a('s_lshl_b32 s51, s49, 3',f's_add_u32 s51, s51, {3*8192}',f'v_add_u32 v{vLs2}, s51, v3',f'v_add_u32 v{vHs2}, s50, v{vLs2}')
    vHa,vHb,vT=232,233,234
    a('s_lshl_b32 s51, s42, 11',f'v_add_u32 v{vHa}, s51, v3',f'v_xor_b32 v{vHb}, 0x800, v{vHa}')
    a('v_lshrrev_b32 v3, 2, v1','v_lshl_add_u32 v3, v2, 2, v3','v_lshrrev_b32 v16, 1, v3','v_and_b32 v16, 3, v16','v_lshlrev_b32 v16, 5, v16')
    a('v_lshl_add_u32 v3, v3, 7, v16','v_and_b32 v16, 3, v1','v_lshl_add_u32 v3, v16, 3, v3')
    a('s_lshl_b32 s51, s49, 12',f's_add_u32 s51, s51, {WR}',f'v_add_u32 v{vT}, s51, v3')
    for nt in range(1,4): a(f'v_xor_b32 v{vT+nt}, {nt*32}, v{vT}')
    vEs,vEl,vO,vF,vFp=238,239,240,241,242
    a('s_lshl_b32 s50, s40, 4','s_add_u32 s50, s50, s41','s_lshl_b32 s51, s50, 3','s_add_u32 s51, s51, s3','s_add_u32 s51, s51, 1','s_lshl_b32 s51, s51, 7',f'v_mov_b32 v{vF}, s51',f'v_xor_b32 v{vFp}, 0x2000, v{vF}')
    a('s_lshl_b32 s50, s50, 15','s_lshl_b32 s51, s3, 13','s_add_u32 s50, s50, s51','s_add_u32 s50, s50, 0xe00000')
    a(f'v_lshl_add_u32 v{vEs}, v0, 4, s50',f'v_xor_b32 v{vEl}, 0x40000, v{vEs}')
    a('s_lshl_b32 s50, s40, 18','s_lshl_b32 s51, s48, 17','s_add_u32 s50, s50, s51','s_lshl_b32 s51, s42, 16','s_add_u32 s50, s50, s51','s_add_u32 s50, s50, s58')
    a('v_and_b32 v3, 1, v2','v_lshlrev_b32 v3, 5, v3','v_lshrrev_b32 v16, 1, v2','v_lshl_add_u32 v3, v16, 4, v3','v_lshl_add_u32 v3, v1, 11, v3',f'v_add_u32 v{vO}, s50, v3')
    a('s_mov_b32 s57, 0','s_movk_i32 s54, 0x2000','s_movk_i32 s55, 0x4000','s_movk_i32 s59, 0x1000','s_mov_b32 s60, 0x8000')
    a('s_waitcnt vmcnt(0)')
    for tt in range(7):
        for r in range(4):
            src=WQ+2*tt+(r>>1)
            a(f'v_and_b32 v{acc(tt,0)+r}, 0xffff0000, v{src}' if r&1 else f'v_lshlrev_b32 v{acc(tt,0)+r}, 16, v{src}')
        for mt in range(1,4):
            for r in range(0,4,2): a(f'v_pk_mov_b32 {vr(acc(tt,mt)+r,2)}, {vr(acc(tt,0)+r,2)}, {vr(acc(tt,0)+r,2)} op_sel:[0,1]')
    def reads(X,W,vx,kk):
        L=[]
        def wr(tt):
            for h in range(2):
                base = vWs if tt==6 else (vWo if tt&1 else vWe)
                off=(32*kk+4*h)*448+(0 if tt==6 else tt*32)
                L.append(f'ds_read_b64_tr_b16 {vr(W+4*tt+2*h,2)}, v{base} offset:{off}')
        wr(0)
        for mt in range(4): L.append(f'ds_read_b128 {vr(X+4*mt,4)}, v{vx} offset:{mt*2048}')
        for tt in range(1,7): wr(tt)
        return L
    order=[(tt,mt if tt%2==0 else 3-mt) for tt in range(7) for mt in range(4)]
    def mfmas(X,W):
        return [f'v_mfma_f32_16x16x32_bf16 {vr(acc(tt,mt),4)}, {vr(W+4*tt,4)}, {vr(X+4*mt,4)}, {vr(acc(tt,mt),4)}' for (tt,mt) in order]
    a('s_barrier'); stamp(1); cyc(8)
    a(reads(XP,WP,vXp,0)); a('s_waitcnt lgkmcnt(0)')
    a.raw('.p2align 3'); a.lab('C_g1')
    upd=[[f's_add_u32 s52, s52, {SLOT}',f's_cmp_eq_u32 s52, {3*SLOT}','s_cselect_b32 s52, 0, s52'],
         f'v_add_u32 v{vXp}, s52, v{vXb0}', f'v_add_u32 v{vXq}, s52, v{vXb1}',
         f'v_add_u32 v{vWe}, s52, v{vWbe}', f'v_add_u32 v{vWo}, s52, v{vWbo}', f'v_add_u32 v{vWs}, s52, v{vWbs}']
    a(interleave(mfmas(XP,WP), reads(XQ,WQ,vXq,1)+upd))
    a('s_waitcnt lgkmcnt(0)','s_barrier')
    a(interleave(mfmas(XQ,WQ), reads(XP,WP,vXp,0)+[['s_add_u32 s57, s57, 1','s_cmp_lt_u32 s57, 16']]))
    a('s_waitcnt lgkmcnt(0)','s_cbranch_scc1 C_g1')
    stamp(2); cyc(9)
    a('s_nop 7')
    T=24; k=0
    def act(dst, s0):
        a(f'v_mul_f32_e64 v{s0}, v{s0}, |v{s0}|',f'v_mul_f32_e64 v{s0+1}, v{s0+1}, |v{s0+1}|')
        a(f'v_cvt_pk_bf16_f32 v{dst}, v{s0}, v{s0+1}',f'v_pk_max_i16 v{dst}, v{dst}, 0')
    so=['0','s54','s55']
    for p in range(3):
        for mt in range(4):
            t=T+4*k; k+=1
            act(t,acc(2*p,mt)); act(t+1,acc(2*p,mt)+2); act(t+2,acc(2*p+1,mt)); act(t+3,acc(2*p+1,mt)+2)
            a(f'buffer_store_dwordx4 {vr(t,4)}, v{vHs}, s[24:27], {so[p]} offen offset:{mt*1024} {o.hst}')
            a(f'ds_write_b128 v{vLs}, {vr(t,4)} offset:{p*8192+mt*1024}')
    for mt in range(4):
        t=T+4*k; k+=1
        act(t,acc(6,mt)); act(t+1,acc(6,mt)+2)
        a(f'buffer_store_dwordx2 {vr(t,2)}, v{vHs2}, s[24:27], 0 offen offset:{mt*1024} {o.hst}')
        a(f'ds_write_b64 v{vLs2}, {vr(t,2)} offset:{mt*1024}')
    A2=112; HF=[176,192]; WF=[208,88]
    ac2=lambda u,nt: A2+(u*4+nt)*4
    for nt in range(4):
        for r in range(4):
            src=B2R+2*nt+(r>>1)
            for u in range(2): a(f'v_and_b32 v{ac2(u,nt)+r}, 0xffff0000, v{src}' if r&1 else f'v_lshlrev_b32 v{ac2(u,nt)+r}, 16, v{src}')
    for i in range(32,64,2): a(f'v_pk_mov_b32 {vr(A2+i,2)}, 0, 0')
    def rd2(j,b):
        L=[]; s=(j&7)*8192
        w=lambda nt: [f'ds_read_b64_tr_b16 {vr(WF[b]+4*nt+2*h,2)}, v{vT+nt} offset:{s+h*2048}' for h in range(2)]
        L+=w(0)
        for u in range(4): L.append(f'ds_read_b128 {vr(HF[b]+4*u,4)}, v{vHa if u<2 else vHb} offset:{s+(u&1)*1024}')
        for nt in range(1,4): L+=w(nt)
        return L
    def mf2(b):
        return [f'v_mfma_f32_16x16x32_bf16 {vr(ac2(u,nt),4)}, {vr(WF[b]+4*nt,4)}, {vr(HF[b]+4*u,4)}, {vr(ac2(u,nt),4)}' for nt in range(4) for u in (range(4) if nt%2==0 else range(3,-1,-1))]
    a('s_mov_b32 s57, 0','s_waitcnt lgkmcnt(0)'); stamp(3); a('s_barrier')
    stamp(4); cyc(10)
    a(rd2(0,0))
    a.raw('.p2align 3'); a.lab('C_g2')
    for j in range(8):
        if j%2==0: a('s_waitcnt vmcnt(0) lgkmcnt(0)' if j==4 else 's_waitcnt lgkmcnt(0)','s_barrier')
        else: a('s_waitcnt lgkmcnt(0)')
        a(interleave(mf2(j&1), rd2(j+1,(j+1)&1)+([['s_add_u32 s57, s57, 1','s_cmp_lt_u32 s57, 7']] if j==7 else [])))
    a('s_cbranch_scc1 C_g2')
    stamp(5); cyc(11)
    a('buffer_load_dwordx2 v[244:245], v243, s[36:39], 0 offen sc1','s_nop 7')
    for j in range(8): a(f'buffer_store_dwordx4 {vr(A2+32+4*j,4)}, v{vEs}, s[24:27], {"s59" if j>=4 else "0"} offen offset:{(j&3)*1024} sc1')
    a('s_mov_b64 exec, 1','s_mov_b32 s61, 0x100000','s_waitcnt vmcnt(0) lgkmcnt(0)')
    a(f'buffer_store_dwordx2 v[244:245], v{vFp}, s[44:47], 0 offen sc1')
    a.lab('C_poll')
    a('s_sub_u32 s61, s61, 1','s_cbranch_scc1 C_go')
    a(f'buffer_load_dwordx2 v[4:5], v{vF}, s[44:47], 0 offen sc1','s_waitcnt vmcnt(0)')
    a('v_cmp_eq_u64 vcc, v[4:5], v[244:245]','s_nop 1','s_cmp_eq_u32 vcc_lo, 1','s_cbranch_scc0 C_poll')
    a.lab('C_go')
    a('s_mov_b64 exec, -1')
    stamp(6)
    for j in range(8): a(f'buffer_load_dwordx4 {vr(A2+32+4*j,4)}, v{vEl}, s[24:27], {"s59" if j>=4 else "0"} offen offset:{(j&3)*1024} sc1')
    for u in range(2):
        for P in range(2):
            t=24+(u*2+P)*4
            for e in range(2):
                j=u*4+2*P+e; d=A2+4*j
                a(f's_waitcnt vmcnt({7-j})')
                a(f'v_pk_add_f32 {vr(d,2)}, {vr(d,2)}, {vr(d+32,2)}',f'v_pk_add_f32 {vr(d+2,2)}, {vr(d+2,2)}, {vr(d+34,2)}')
                a(f'v_cvt_pk_bf16_f32 v{t+2*e}, v{d}, v{d+1}',f'v_cvt_pk_bf16_f32 v{t+2*e+1}, v{d+2}, v{d+3}')
            a('s_nop 1',f'v_permlane16_swap_b32 v{t}, v{t+2}',f'v_permlane16_swap_b32 v{t+1}, v{t+3}')
    a('s_nop 1')
    for u in range(2):
        for P in range(2):
            t=24+(u*2+P)*4
            a(f'buffer_store_dwordx4 {vr(t,4)}, v{vO}, s[32:35], {"s60" if u else "0"} offen offset:{P*64}')
    if o.stamp: a('s_waitcnt vmcnt(0)'); stamp(7); stamp_out(0x8000000)
    a.lab('L_end'); a('s_endpgm')
    a.raw('.section .rodata,"a"'); a.raw('.p2align 6')
    for s in [f'.amdhsa_kernel {KN}','  .amdhsa_next_free_vgpr 248','  .amdhsa_next_free_sgpr 102','  .amdhsa_accum_offset 248',
              '  .amdhsa_group_segment_fixed_size 0','  .amdhsa_kernarg_size 64','  .amdhsa_user_sgpr_count 2',
              '  .amdhsa_user_sgpr_kernarg_segment_ptr 1','  .amdhsa_system_sgpr_workgroup_id_x 1','.end_amdhsa_kernel']: a.raw(s)
    return a.text()
ap=argparse.ArgumentParser()
ap.add_argument('-o',default='standalone__dense_activation_squared_relu__prompt.s')
ap.add_argument('--stamp',action='store_true'); ap.add_argument('--nopf',action='store_true')
ap.add_argument('--hst',default='sc1'); ap.add_argument('--hld',default='sc1')
o=ap.parse_args()
open(o.o,'w').write(gen(o))
```

```python
import sys, argparse
HEADER = open('standalone__dense_activation_squared_relu__prompt.s.ref').read().split('; Override')[0]
KN='standalone__dense_activation_squared_relu__prompt_kernel'
class Asm:
    def __init__(self): self.l=[]
    def __call__(self, *ss):
        for s in ss:
            if isinstance(s,list): self(*s)
            else: self.l.append('    '+s)
    def lab(self, s): self.l.append(s+':')
    def raw(self, s): self.l.append(s)
    def text(self): return '\n'.join(self.l)+'\n'
def vr(b,n=1,p='v'): return f'{p}{b}' if n==1 else f'{p}[{b}:{b+n-1}]'
def interleave(main, fill, start=0):
    out=[]; fi=0
    for i,m in enumerate(main):
        out.append(m)
        if i>=start and fi<len(fill): out.append(fill[fi]); fi+=1
    out.extend(fill[fi:])
    return out
def srd(a,d,b,size,add=None):
    if add is None: a(f's_mov_b32 s{d}, s{b}', f's_mov_b32 s{d+1}, s{b+1}')
    else: a(f's_add_u32 s{d}, s{b}, {add}', f's_addc_u32 s{d+1}, s{b+1}, 0')
    a(f's_mov_b32 s{d+2}, {size}', f's_mov_b32 s{d+3}, 0x20000')
X_,W1_,B1_,W2_,B2_,OUT_,DBG_,WS_=4,6,8,10,12,14,16,18
NST=12
def gen(o):
    a=Asm()
    def stamp(i):
        if o.stamp: a(f's_memrealtime s[{64+2*i}:{65+2*i}]')
    def cyc(i):
        if o.stamp: a(f's_memtime s[{64+2*i}:{65+2*i}]')
    def stamp_out(region):
        if not o.stamp: return
        a('s_waitcnt lgkmcnt(0)')
        srd(a,92,WS_,'0x10000000')
        a('s_lshl_b32 s96, s2, 2','s_and_b32 s97, s3, 3','s_add_u32 s96, s96, s97','s_lshl_b32 s96, s96, 6',f's_add_u32 s96, s96, {region}','v_mov_b32 v1, 0')
        for i in range(NST): a(f'v_mov_b32 v2, s{64+2*i}', f'buffer_store_dword v2, v1, s[92:95], s96 offen offset:{4*i}', 's_nop 1')
    SLOT=45056; BOFF=16384; WR=98304
    a.raw(HEADER.rstrip())
    a.raw('; @launch grid=(256,1,1) block=(512,1,1) lds=163840')
    a.raw('.amdgcn_target "amdgcn-amd-amdhsa--gfx950"'); a.raw('.text')
    a.raw(f'.globl {KN}'); a.raw('.p2align 8'); a.raw(f'.type {KN},@function'); a.lab(KN)
    a('s_cmp_ge_u32 s2, %d'%(0 if 'empty' in o.abl else 256),'s_cbranch_scc1 L_end')
    a('s_load_dwordx16 s[4:19], s[0:1], 0')
    stamp(0)
    a('v_lshrrev_b32 v1, 6, v0','v_and_b32 v0, 63, v0','s_and_b32 s44, s2, 7','s_lshr_b32 s45, s2, 3','v_readfirstlane_b32 s3, v1')
    a('s_and_b32 s40, s44, 1','s_lshl_b32 s40, s40, 3','s_and_b32 s46, s45, 7','s_add_u32 s40, s40, s46')
    a('s_lshr_b32 s41, s44, 1','s_lshl_b32 s41, s41, 2','s_lshr_b32 s46, s45, 3','s_add_u32 s41, s41, s46')
    a('s_lshr_b32 s42, s41, 3','s_and_b32 s43, s41, 7','s_mul_i32 s47, s41, 448')
    a('s_cmp_lt_u32 s3, 4','s_cbranch_scc1 L_cons')
    a('s_sub_u32 s48, s3, 4')
    a('s_movk_i32 s50, 2341','s_movk_i32 s51, 7168','s_mul_i32 s49, s48, 114688','s_add_u32 s49, s49, s47')
    for i in range(7):
        a(f'v_add_u32 v1, {64*i}, v0','v_mul_u32_u24 v2, s50, v1','v_lshrrev_b32 v2, 16, v2')
        a('v_mul_u32_u24 v3, 28, v2','v_sub_u32 v3, v1, v3','v_lshrrev_b32 v4, 2, v2','v_and_b32 v4, 2, v4','v_xor_b32 v3, v3, v4')
        a('v_lshlrev_b32 v3, 4, v3','v_mad_u32_u24 v3, v2, s51, v3',f'v_add_u32 v{14+i}, s49, v3')
    a('s_lshl_b32 s49, s40, 18','s_lshl_b32 s50, s48, 16','s_add_u32 s49, s49, s50')
    a('v_lshrrev_b32 v5, 3, v0','v_lshlrev_b32 v5, 11, v5','v_add_u32 v1, s49, v5')
    a('v_and_b32 v6, 7, v0','v_lshrrev_b32 v7, 4, v0','v_xor_b32 v2, v6, v7','v_lshlrev_b32 v2, 4, v2')
    for i in range(4):
        if i&1: a('v_xor_b32 v3, 64, v2',f'v_add_u32 v{10+i}, v1, v3')
        else: a(f'v_add_u32 v{10+i}, v1, v2')
        if i: a(f'v_add_u32 v{10+i}, {i*16384}, v{10+i}')
    a('s_lshr_b32 s52, s41, 2','s_lshr_b32 s53, s40, 3','s_lshl_b32 s53, s53, 1','s_add_u32 s52, s52, s53')
    a('s_and_b32 s53, s40, 1','s_add_u32 s52, s52, s53','s_and_b32 s52, s52, 3')
    a(f's_mul_i32 s53, s52, {458752*4}','s_lshl_b32 s52, s52, 9')
    a('s_lshl_b32 s54, s48, 12','s_mul_i32 s55, s48, 7168',f's_add_u32 s55, s55, {BOFF}')
    a(f's_mov_b32 s56, {SLOT}','s_mov_b32 s57, 0')
    a('s_mul_i32 s58, s42, 1792','s_mul_i32 s59, s40, 112','s_add_u32 s58, s58, s59','s_and_b32 s59, s41, 3','s_mul_i32 s59, s59, 28','s_add_u32 s58, s58, s59')
    a('s_mul_i32 s59, s48, 7','s_add_u32 s58, s58, s59','s_lshl_b32 s58, s58, 11','s_and_b32 s59, s41, 4','s_lshl_b32 s59, s59, 8','s_add_u32 s58, s58, s59')
    a('s_waitcnt lgkmcnt(0)')
    stamp(5)
    srd(a,20,X_,'0x400000'); srd(a,24,W1_,'0x700000')
    a(f's_add_u32 s58, s{W2_}, s58',f's_addc_u32 s59, s{W2_+1}, 0','s_movk_i32 s60, 512')
    a.lab('P_loop')
    a('s_cmp_lt_u32 s57, 3','s_cbranch_scc1 P_issue','s_waitcnt vmcnt(11)','s_barrier')
    a.lab('P_issue')
    a('s_add_u32 s61, s56, s55','s_add_u32 s62, s56, s54')
    for i in range(7): a(f's_add_u32 m0, s61, {i*1024}','s_nop 0',f'buffer_load_dwordx4 v{14+i}, s[24:27], s53 offen lds')
    for i in range(4): a(f's_add_u32 m0, s62, {i*1024}','s_nop 0',f'buffer_load_dwordx4 v{10+i}, s[20:23], s52 offen lds')
    a('s_add_u32 s52, s52, 128','s_add_u32 s53, s53, 458752','s_cmp_eq_u32 s52, 2048','s_cselect_b32 s52, 0, s52','s_cselect_b32 s53, 0, s53')
    a(f's_add_u32 s56, s56, {SLOT}',f's_cmp_eq_u32 s56, {3*SLOT}','s_cselect_b32 s56, 0, s56')
    a('s_add_u32 s57, s57, 1','s_cmp_lt_u32 s57, 2','s_cbranch_scc1 P_loop')
    a('s_cmp_eq_u32 s57, 2','s_cbranch_scc0 P_pf'); stamp(6); a('s_waitcnt vmcnt(11)','s_barrier','s_branch P_loop')
    a.lab('P_pf')
    if not o.nopf:
        for i in range(8): a(f's_load_dword s63, s[58:59], {i*64}')
        a('s_add_u32 s58, s58, s60','s_addc_u32 s59, s59, 0','s_xor_b32 s60, s60, 1024')
    a('s_cmp_lt_u32 s57, 16','s_cbranch_scc1 P_loop')
    if o.pfv:
        srd(a,28,58,7*2048)
        a('v_lshl_add_u32 v1, v6, 7, v5','buffer_load_dword v2, v1, s[28:31], 0 offen')
    a('s_lshr_b32 s49, s48, 1','s_and_b32 s50, s48, 1')
    a('s_mul_i32 s51, s42, 3670016'); srd(a,28,W2_,3670016,'s51')
    a('s_mul_i32 s51, s40, 112','s_mul_i32 s52, s42, 56','s_add_u32 s51, s51, s52','s_lshl_b32 s51, s51, 13'); srd(a,32,WS_,56*8192,'s51')
    srd(a,36,DBG_,260)
    a('s_lshl_b32 s51, s43, 8','s_lshl_b32 s52, s50, 7','s_add_u32 s51, s51, s52')
    a('v_lshlrev_b32 v7, 1, v7','v_xor_b32 v3, v6, v7','v_lshl_add_u32 v3, v3, 4, v5','v_add_u32 v21, s51, v3')
    for q in range(1,4): a(f'v_add_u32 v{21+q}, {q*16384}, v21')
    a('s_lshl_b32 s54, s50, 12','v_lshl_add_u32 v25, v0, 4, s54')
    a('s_mul_i32 s55, s43, 7')
    def ldW(mreg):
        for q in range(4): a(f's_add_u32 m0, {mreg}, {WR+q*1024}','s_nop 0',f'buffer_load_dwordx4 v{21+q}, s[28:31], s53 offen lds')
    def ldH(mreg):
        a(f's_mov_b32 m0, {mreg}','s_nop 0')
        for q in range(4): a(f'buffer_load_dwordx4 v25, s[32:35], s52 offen offset:{q*1024} {o.hld} lds')
    def slotT(ireg):
        a(f's_add_u32 s61, {ireg}, 7','s_and_b32 s61, s61, 7','s_lshl_b32 s61, s61, 13','s_add_u32 s61, s61, s54')
        a(f's_cmp_ge_u32 {ireg}, s55','s_cselect_b32 s52, 7, 0',f's_add_u32 s52, s52, {ireg}','s_lshl_b32 s53, s52, 16','s_lshl_b32 s52, s52, 13')
    a('s_waitcnt vmcnt(%d)'%(12 if o.pfv else 11),'s_barrier')
    a('s_xor_b32 s57, s49, 1')
    a.lab('P_w0')
    a('s_lshl_b32 s61, s57, 13','s_add_u32 s61, s61, s54','s_add_u32 s53, s57, s55','s_cmp_eq_u32 s57, 7','s_cselect_b32 s53, 56, s53','s_lshl_b32 s53, s53, 16')
    ldW('s61')
    a('s_add_u32 s57, s57, 2','s_cmp_lt_u32 s57, 8','s_cbranch_scc1 P_w0')
    a('s_waitcnt vmcnt(%d)'%(17 if o.pfv else 16),'s_barrier','s_barrier')
    srd(a,44,WS_,'0x40000','0x1600000')
    a('s_lshl_b32 s51, s40, 4','v_mov_b32 v29, s51','s_add_u32 s56, s51, s41','s_lshl_b32 s56, s56, 10','v_lshl_add_u32 v27, v0, 3, s56')
    a('s_lshl_b32 s56, s42, 3','s_add_u32 s51, s51, s56','s_lshl_b32 s51, s51, 10','s_lshl_b32 s56, s43, 3','s_add_u32 s51, s51, s56','v_lshl_add_u32 v26, v0, 10, s51')
    a('s_mov_b32 s60, 0x100000')
    a.lab('P_nonce')
    a('buffer_load_dwordx2 v[32:33], v29, s[36:39], 0 offen sc1','s_waitcnt vmcnt(0)','v_readfirstlane_b32 s62, v32')
    a('s_sub_u32 s60, s60, 1','s_cbranch_scc1 P_n2','s_cmp_eq_u32 s62, 0','s_cbranch_scc1 P_nonce')
    a.lab('P_n2')
    a('s_waitcnt vmcnt(0) lgkmcnt(0)'); stamp(1); a('s_barrier')
    a(['s_barrier']*((o.fb+1)//2))
    stamp(2)
    a('s_cmp_eq_u32 s48, 0','s_cbranch_scc0 P_noflag','s_mov_b64 exec, 0xff','buffer_store_dwordx2 v[32:33], v26, s[44:47], 0 offen sc1','s_mov_b64 exec, -1')
    a.lab('P_noflag')
    a(['s_barrier']*(3-(o.fb+1)//2))
    a('s_mov_b32 s57, s49')
    a.lab('P_w1')
    slotT('s57'); ldW('s61')
    a('s_add_u32 s57, s57, 2','s_cmp_lt_u32 s57, 6','s_cbranch_scc1 P_w1')
    a('s_mov_b64 exec, 0xff','s_mov_b32 s60, 0x100000')
    a.lab('P_poll')
    a('s_sub_u32 s60, s60, 1','s_cbranch_scc1 P_go')
    a('buffer_load_dwordx2 v[30:31], v27, s[44:47], 0 offen sc1','s_waitcnt vmcnt(0)')
    a('v_cmp_eq_u64 vcc, v[30:31], v[32:33]','s_nop 1','s_cmp_eq_u32 vcc_lo, 0xff','s_cbranch_scc0 P_poll')
    a.lab('P_go')
    a('s_mov_b64 exec, -1')
    stamp(3)
    a('s_mov_b32 s57, s49')
    a.lab('P_h1')
    slotT('s57'); ldH('s61')
    a('s_add_u32 s57, s57, 2','s_cmp_lt_u32 s57, 6','s_cbranch_scc1 P_h1')
    a('s_waitcnt vmcnt(8)'); stamp(4); a('s_barrier')
    slotT('s57'); ldH('s61'); ldW('s61'); a('s_add_u32 s57, s57, 2')
    a('s_waitcnt vmcnt(12)','s_barrier')
    a.lab('P_g2')
    slotT('s57'); ldH('s61'); ldW('s61')
    a('s_add_u32 s57, s57, 2','s_cmp_lt_u32 s57, 54','s_waitcnt vmcnt(16)','s_barrier','s_cbranch_scc1 P_g2')
    a('s_waitcnt vmcnt(0) lgkmcnt(0)')
    stamp_out(0x8100000)
    a('s_endpgm')
    a.lab('L_cons')
    XP,XQ,WP,WQ,ACC,B2R = 24,40,56,84,112,224
    vXb0,vXb1,vWbe,vWbo,vWbs = 4,5,6,7,8
    vXp,vXq,vWe,vWo,vWs = 9,10,11,12,13
    vHs,vHs2,vLs,vLs2=14,15,19,20
    acc=lambda tt,mt: ACC+(tt*4+mt)*4
    a('s_and_b32 s48, s3, 1','s_lshr_b32 s49, s3, 1')
    a('v_and_b32 v1, 15, v0','v_lshrrev_b32 v2, 4, v0')
    a('s_lshl_b32 s50, s49, 8','s_add_u32 s50, s50, s47','v_lshlrev_b32 v3, 3, v2','v_add_u32 v14, s50, v3')
    a('s_lshl_b32 s50, s49, 5','s_add_u32 s50, s50, s47','s_add_u32 s50, s50, 192','v_add_u32 v15, s50, v3')
    a('s_lshl_b32 s50, s43, 8','s_lshl_b32 s51, s49, 7','s_add_u32 s58, s50, s51','v_add_u32 v16, s58, v3')
    a('s_waitcnt lgkmcnt(0)')
    srd(a,20,B1_,7168); srd(a,28,B2_,2048)
    for tt in range(6): a(f'buffer_load_dwordx2 {vr(WQ+2*tt,2)}, v14, s[20:23], 0 offen offset:{tt*32}')
    a(f'buffer_load_dwordx2 {vr(WQ+12,2)}, v15, s[20:23], 0 offen')
    for nt in range(4): a(f'buffer_load_dwordx2 {vr(B2R+2*nt,2)}, v16, s[28:31], 0 offen offset:{nt*32}')
    srd(a,24,WS_,'0x1600000'); srd(a,32,OUT_,'0x400000'); srd(a,36,DBG_,260)
    a('s_lshl_b32 s50, s40, 4',f'v_mov_b32 v243, s50','s_or_b32 s50, s41, s3','s_cmp_eq_u32 s50, 0','s_cbranch_scc0 C_nn')
    a('s_memrealtime s[50:51]','s_waitcnt lgkmcnt(0)','s_or_b32 s50, s50, 1','s_mul_i32 s50, s50, 0x9e3779b1','v_mov_b32 v244, s50','v_mov_b32 v245, s51','s_mov_b64 exec, 1')
    a('buffer_store_dwordx2 v[244:245], v243, s[36:39], 0 offen sc1','s_mov_b64 exec, -1')
    a.lab('C_nn')
    srd(a,44,WS_,'0x40000','0x1600000')
    a('s_lshl_b32 s50, s48, 13')
    a('v_lshrrev_b32 v3, 1, v1','v_xor_b32 v3, v3, v2','v_lshlrev_b32 v3, 4, v3')
    a('v_lshl_add_u32 v3, v1, 7, v3',f'v_add_u32 v{vXb0}, s50, v3',f'v_xor_b32 v{vXb1}, 64, v{vXb0}')
    a('v_lshrrev_b32 v3, 2, v1','v_lshl_add_u32 v3, v2, 3, v3','v_mul_u32_u24 v3, 448, v3')
    a('v_and_b32 v16, 3, v1','v_lshl_add_u32 v3, v16, 3, v3',f'v_add_u32 v3, {BOFF}, v3')
    a('v_and_b32 v16, 1, v2','v_lshlrev_b32 v17, 5, v16','s_lshl_b32 s50, s49, 8','v_add_u32 v18, s50, v3')
    a(f'v_add_u32 v{vWbe}, v18, v17',f'v_sub_u32 v{vWbo}, v18, v17')
    a('s_add_u32 s50, s49, 6','v_xor_b32 v16, s50, v16',f'v_lshl_add_u32 v{vWbs}, v16, 5, v3')
    a(f's_mov_b32 s52, {SLOT}')
    for d,s in ((vXp,vXb0),(vXq,vXb1),(vWe,vWbe),(vWo,vWbo),(vWs,vWbs)): a(f'v_add_u32 v{d}, s52, v{s}')
    a('s_mul_i32 s50, s40, 112','s_mul_i32 s51, s41, 7','s_add_u32 s50, s50, s51','s_lshl_b32 s50, s50, 13')
    a('s_lshl_b32 s51, s48, 12','v_lshl_add_u32 v3, v0, 4, s51')
    a('s_lshl_b32 s51, s49, 15',f'v_add_u32 v{vLs}, s51, v3',f'v_add_u32 v{vHs}, s50, v{vLs}')
    a('s_lshl_b32 s51, s49, 3',f's_add_u32 s51, s51, {3*8192}',f'v_add_u32 v{vLs2}, s51, v3',f'v_add_u32 v{vHs2}, s50, v{vLs2}')
    if o.t3: a('s_lshl_b32 s51, s3, 11',f's_add_u32 s51, s51, {3*8192}','v_lshl_add_u32 v246, v0, 4, s51',f'v_add_u32 v{vHs2}, s50, v246')
    vHa,vHb,vT=232,233,234
    a('s_lshl_b32 s51, s42, 11',f'v_add_u32 v{vHa}, s51, v3',f'v_xor_b32 v{vHb}, 0x800, v{vHa}')
    a('v_lshrrev_b32 v3, 2, v1','v_lshl_add_u32 v3, v2, 2, v3','v_lshrrev_b32 v16, 1, v3','v_and_b32 v16, 3, v16','v_lshlrev_b32 v16, 5, v16')
    a('v_lshl_add_u32 v3, v3, 7, v16','v_and_b32 v16, 3, v1','v_lshl_add_u32 v3, v16, 3, v3')
    a('s_lshl_b32 s51, s49, 12',f's_add_u32 s51, s51, {WR}',f'v_add_u32 v{vT}, s51, v3')
    for nt in range(1,4): a(f'v_xor_b32 v{vT+nt}, {nt*32}, v{vT}')
    vEs,vEl,vO,vF,vFp=238,239,240,241,242
    a('s_lshl_b32 s50, s40, 4','s_add_u32 s50, s50, s41','s_lshl_b32 s51, s50, 3','s_add_u32 s51, s51, s3','s_add_u32 s51, s51, 1','s_lshl_b32 s51, s51, 7',f'v_mov_b32 v{vF}, s51',f'v_xor_b32 v{vFp}, 0x2000, v{vF}')
    a('s_lshl_b32 s50, s50, 15','s_lshl_b32 s51, s3, 13','s_add_u32 s50, s50, s51','s_add_u32 s50, s50, 0xe00000')
    a(f'v_lshl_add_u32 v{vEs}, v0, 4, s50',f'v_xor_b32 v{vEl}, 0x40000, v{vEs}')
    a('s_lshl_b32 s50, s40, 18','s_lshl_b32 s51, s48, 17','s_add_u32 s50, s50, s51','s_lshl_b32 s51, s42, 16','s_add_u32 s50, s50, s51','s_add_u32 s50, s50, s58')
    a('v_and_b32 v3, 1, v2','v_lshlrev_b32 v3, 5, v3','v_lshrrev_b32 v16, 1, v2','v_lshl_add_u32 v3, v16, 4, v3','v_lshl_add_u32 v3, v1, 11, v3',f'v_add_u32 v{vO}, s50, v3')
    a('s_mov_b32 s57, 0','s_movk_i32 s54, 0x2000','s_movk_i32 s55, 0x4000','s_movk_i32 s59, 0x1000','s_mov_b32 s60, 0x8000')
    a('s_waitcnt vmcnt(0)')
    for tt in range(7):
        for r in range(4):
            src=WQ+2*tt+(r>>1)
            a(f'v_and_b32 v{acc(tt,0)+r}, 0xffff0000, v{src}' if r&1 else f'v_lshlrev_b32 v{acc(tt,0)+r}, 16, v{src}')
        for mt in range(1,4):
            for r in range(0,4,2): a(f'v_pk_mov_b32 {vr(acc(tt,mt)+r,2)}, {vr(acc(tt,0)+r,2)}, {vr(acc(tt,0)+r,2)} op_sel:[0,1]')
    def reads(X,W,vx,kk):
        L=[]
        def wr(tt):
            for h in range(2):
                base = vWs if tt==6 else (vWo if tt&1 else vWe)
                off=(32*kk+4*h)*448+(0 if tt==6 else tt*32)
                L.append(f'ds_read_b64_tr_b16 {vr(W+4*tt+2*h,2)}, v{base} offset:{off}')
        wr(0)
        for mt in range(4): L.append(f'ds_read_b128 {vr(X+4*mt,4)}, v{vx} offset:{mt*2048}')
        for tt in range(1,7): wr(tt)
        return L
    order=[(tt,mt if tt%2==0 else 3-mt) for tt in range(7) for mt in range(4)]
    def mfmas(X,W):
        return [f'v_mfma_f32_16x16x32_bf16 {vr(acc(tt,mt),4)}, {vr(W+4*tt,4)}, {vr(X+4*mt,4)}, {vr(acc(tt,mt),4)}' for (tt,mt) in order]
    a('s_barrier'); stamp(1); cyc(8)
    a(reads(XP,WP,vXp,0)); a('s_waitcnt lgkmcnt(0)')
    a.raw('.p2align 3'); a.lab('C_g1')
    upd=[[f's_add_u32 s52, s52, {SLOT}',f's_cmp_eq_u32 s52, {3*SLOT}','s_cselect_b32 s52, 0, s52'],
         f'v_add_u32 v{vXp}, s52, v{vXb0}', f'v_add_u32 v{vXq}, s52, v{vXb1}',
         f'v_add_u32 v{vWe}, s52, v{vWbe}', f'v_add_u32 v{vWo}, s52, v{vWbo}', f'v_add_u32 v{vWs}, s52, v{vWbs}']
    if o.pw:
        upd+=[[f's_sub_u32 s61, s57, {o.pw}','s_lshr_b32 s62, s61, 2','s_lshl_b32 s62, s62, 13','s_and_b32 s63, s61, 3'],
              ['s_lshl_b32 s63, s63, 10','s_add_u32 s62, s62, s63','s_cmp_lt_u32 s61, 12','s_cselect_b32 s62, s62, 0x7000000'],
              f'buffer_store_dwordx4 {vr(B2R,4)}, v{vHs}, s[24:27], s62 offen {o.pwf}']
    a(interleave(mfmas(XP,WP), reads(XQ,WQ,vXq,1)+upd))
    a('s_waitcnt lgkmcnt(0)','s_barrier')
    a(interleave(mfmas(XQ,WQ), reads(XP,WP,vXp,0)+[['s_add_u32 s57, s57, 1','s_cmp_lt_u32 s57, 16']]))
    a('s_waitcnt lgkmcnt(0)','s_cbranch_scc1 C_g1')
    if 'ep2' in o.abl: a('s_mov_b32 s57, 0'); a.lab('C_ep'); a('s_waitcnt vmcnt(0)')
    stamp(2); cyc(9)
    a('s_nop 7')
    if o.pw: a('s_waitcnt vmcnt(0)')
    T=24; k=0
    def act(dst, s0):
        a(f'v_mul_f32_e64 v{s0}, v{s0}, |v{s0}|',f'v_mul_f32_e64 v{s0+1}, v{s0+1}, |v{s0+1}|')
        a(f'v_cvt_pk_bf16_f32 v{dst}, v{s0}, v{s0+1}',f'v_pk_max_i16 v{dst}, v{dst}, 0')
    so=['0','s54','s55']
    for p in range(3):
        for mt in range(4):
            t=T+4*k; k+=1
            act(t,acc(2*p,mt)); act(t+1,acc(2*p,mt)+2); act(t+2,acc(2*p+1,mt)); act(t+3,acc(2*p+1,mt)+2)
            if 'nost' not in o.abl: a(f'buffer_store_dwordx4 {vr(t,4)}, v{vHs}, s[24:27], {so[p]} offen offset:{mt*1024} {o.hst}')
            if 'nods' not in o.abl: a(f'ds_write_b128 v{vLs}, {vr(t,4)} offset:{p*8192+mt*1024}')
    for mt in range(4):
        t=T+4*k; k+=1
        act(t,acc(6,mt)); act(t+1,acc(6,mt)+2)
        if not o.t3: a(f'buffer_store_dwordx2 {vr(t,2)}, v{vHs2}, s[24:27], 0 offen offset:{mt*1024} {o.hst}')
        a(f'ds_write_b64 v{vLs2}, {vr(t,2)} offset:{mt*1024}')
    A2=112; HF=[176,192]; WF=[208,88]
    ac2=lambda u,nt: A2+(u*4+nt)*4
    for nt in range(4):
        for r in range(4):
            src=B2R+2*nt+(r>>1)
            for u in range(2): a(f'v_and_b32 v{ac2(u,nt)+r}, 0xffff0000, v{src}' if r&1 else f'v_lshlrev_b32 v{ac2(u,nt)+r}, 16, v{src}')
    for i in range(32,64,2): a(f'v_pk_mov_b32 {vr(A2+i,2)}, 0, 0')
    def rd2(j,b):
        L=[]; s=(j&7)*8192
        w=lambda nt: [f'ds_read_b64_tr_b16 {vr(WF[b]+4*nt+2*h,2)}, v{vT+nt} offset:{s+h*2048}' for h in range(2)]
        L+=w(0)
        for u in range(4): L.append(f'ds_read_b128 {vr(HF[b]+4*u,4)}, v{vHa if u<2 else vHb} offset:{s+(u&1)*1024}')
        for nt in range(1,4): L+=w(nt)
        return L
    def mf2(b):
        return [f'v_mfma_f32_16x16x32_bf16 {vr(ac2(u,nt),4)}, {vr(WF[b]+4*nt,4)}, {vr(HF[b]+4*u,4)}, {vr(ac2(u,nt),4)}' for nt in range(4) for u in (range(4) if nt%2==0 else range(3,-1,-1))]
    if 'ep2' in o.abl: a('s_add_u32 s57, s57, 1','s_cmp_lt_u32 s57, 2','s_cbranch_scc1 C_ep')
    a('s_mov_b32 s57, 0','s_waitcnt lgkmcnt(0)'); stamp(3); a('s_barrier')
    stamp(4); cyc(10)
    if o.t3:
        a('ds_read_b128 v[104:107], v246','ds_read_b128 v[108:111], v246 offset:1024')
    a(rd2(0,0))
    if o.tag:
        a('buffer_load_dwordx2 v[244:245], v243, s[36:39], 0 offen sc1')
        for i in range(4): a(f's_mov_b32 s{52+i}, {hex(0x07060500+i)}')
    if o.t3:
        a('s_waitcnt lgkmcnt(12)',f'buffer_store_dwordx4 v[104:107], v{vHs2}, s[24:27], 0 offen {o.hst}',f'buffer_store_dwordx4 v[108:111], v{vHs2}, s[24:27], 0 offen offset:1024 {o.hst}')
    a.raw('.p2align 3'); a.lab('C_g2')
    for j in range(8):
        if j%2==0: a('s_waitcnt vmcnt(0) lgkmcnt(0)' if j==o.fb-1 else 's_waitcnt lgkmcnt(0)','s_barrier')
        else: a('s_waitcnt lgkmcnt(0)')
        a(interleave(mf2(j&1), rd2(j+1,(j+1)&1)+([['s_add_u32 s57, s57, 1','s_cmp_lt_u32 s57, 7']] if j==7 else [])))
    a('s_cbranch_scc1 C_g2')
    stamp(5); cyc(11)
    if not o.tag:
        a('buffer_load_dwordx2 v[244:245], v243, s[36:39], 0 offen sc1','s_nop 7')
        for j in range(8): a(f'buffer_store_dwordx4 {vr(A2+32+4*j,4)}, v{vEs}, s[24:27], {"s59" if j>=4 else "0"} offen offset:{(j&3)*1024} sc1')
        a('s_mov_b64 exec, 1','s_mov_b32 s61, 0x100000','s_waitcnt vmcnt(0) lgkmcnt(0)')
        a(f'buffer_store_dwordx2 v[244:245], v{vFp}, s[44:47], 0 offen sc1')
        a.lab('C_poll')
        a('s_sub_u32 s61, s61, 1','s_cbranch_scc1 C_go')
        a(f'buffer_load_dwordx2 v[4:5], v{vF}, s[44:47], 0 offen sc1','s_waitcnt vmcnt(0)')
        a('v_cmp_eq_u64 vcc, v[4:5], v[244:245]','s_nop 1','s_cmp_eq_u32 vcc_lo, 1','s_cbranch_scc0 C_poll')
        a.lab('C_go')
        a('s_mov_b64 exec, -1')
        stamp(6)
        for j in range(8): a(f'buffer_load_dwordx4 {vr(A2+32+4*j,4)}, v{vEl}, s[24:27], {"s59" if j>=4 else "0"} offen offset:{(j&3)*1024} sc1')
        for u in range(2):
            for P in range(2):
                t=24+(u*2+P)*4
                for e in range(2):
                    j=u*4+2*P+e; d=A2+4*j
                    a(f's_waitcnt vmcnt({7-j})')
                    a(f'v_pk_add_f32 {vr(d,2)}, {vr(d,2)}, {vr(d+32,2)}',f'v_pk_add_f32 {vr(d+2,2)}, {vr(d+2,2)}, {vr(d+34,2)}')
                    a(f'v_cvt_pk_bf16_f32 v{t+2*e}, v{d}, v{d+1}',f'v_cvt_pk_bf16_f32 v{t+2*e+1}, v{d+2}, v{d+3}')
                a('s_nop 1',f'v_permlane16_swap_b32 v{t}, v{t+2}',f'v_permlane16_swap_b32 v{t+1}, v{t+3}')
    else:
        R=176
        a('s_nop 7')
        for j in range(8):
            d=A2+32+4*j
            for i in range(4): a(f'v_perm_b32 v{d+i}, v{d+i}, v244, s{52+i}')
            a(f'buffer_store_dwordx4 {vr(d,4)}, v{vEs}, s[24:27], {"s59" if j>=4 else "0"} offen offset:{(j&3)*1024} sc1')
        a('s_mov_b32 s61, 0x100000','s_mov_b32 s62, 0x0c0c0400','s_mov_b32 s63, 0x04000c0c','s_waitcnt lgkmcnt(0)')
        a.lab('C_poll')
        for j in range(8): a(f'buffer_load_dwordx4 {vr(R+4*j,4)}, v{vEl}, s[24:27], {"s59" if j>=4 else "0"} offen offset:{(j&3)*1024} sc1')
        a('v_mov_b32 v6, 0')
        for j in range(8):
            d=R+4*j
            a(f's_waitcnt vmcnt({7-j})',f'v_perm_b32 v4, v{d+1}, v{d}, s62',f'v_perm_b32 v5, v{d+3}, v{d+2}, s63')
            a('v_bitop3_b32 v4, v4, v5, v244 bitop3:0x96','v_or_b32 v6, v6, v4')
        a('v_cmp_ne_u32 vcc, 0, v6','s_sub_u32 s61, s61, 1','s_cbranch_scc1 C_go','s_nop 1','s_cbranch_vccnz C_poll')
        a.lab('C_go')
        stamp(6)
        for u in range(2):
            for P in range(2):
                t=24+(u*2+P)*4
                for e in range(2):
                    j=u*4+2*P+e; d=A2+4*j; r=R+4*j
                    a(f'v_pk_add_f32 {vr(d,2)}, {vr(d,2)}, {vr(r,2)}',f'v_pk_add_f32 {vr(d+2,2)}, {vr(d+2,2)}, {vr(r+2,2)}')
                    a(f'v_cvt_pk_bf16_f32 v{t+2*e}, v{d}, v{d+1}',f'v_cvt_pk_bf16_f32 v{t+2*e+1}, v{d+2}, v{d+3}')
                a('s_nop 1',f'v_permlane16_swap_b32 v{t}, v{t+2}',f'v_permlane16_swap_b32 v{t+1}, v{t+3}')
    a('s_nop 1')
    for u in range(2):
        for P in range(2):
            t=24+(u*2+P)*4
            a(f'buffer_store_dwordx4 {vr(t,4)}, v{vO}, s[32:35], {"s60" if u else "0"} offen offset:{P*64} {o.ost}')
    if o.stamp: a('s_waitcnt vmcnt(0)'); stamp(7); stamp_out(0x8000000)
    a.lab('L_end'); a('s_endpgm')
    a.raw('.section .rodata,"a"'); a.raw('.p2align 6')
    for s in [f'.amdhsa_kernel {KN}','  .amdhsa_next_free_vgpr 248','  .amdhsa_next_free_sgpr 102','  .amdhsa_accum_offset 248',
              '  .amdhsa_group_segment_fixed_size 0','  .amdhsa_kernarg_size 64','  .amdhsa_user_sgpr_count 2',
              '  .amdhsa_user_sgpr_kernarg_segment_ptr 1','  .amdhsa_system_sgpr_workgroup_id_x 1','.end_amdhsa_kernel']: a.raw(s)
    return a.text()
ap=argparse.ArgumentParser()
ap.add_argument('-o',default='standalone__dense_activation_squared_relu__prompt.s')
ap.add_argument('--stamp',action='store_true'); ap.add_argument('--abl',default=''); ap.add_argument('--tag',action='store_true'); ap.add_argument('--fb',type=int,default=5); ap.add_argument('--nopf',action='store_true'); ap.add_argument('--pfv',action='store_true'); ap.add_argument('--t3',action='store_true'); ap.add_argument('--pw',type=int,default=0); ap.add_argument('--pwf',default='sc1')
ap.add_argument('--ost',default=''); ap.add_argument('--hst',default='sc1'); ap.add_argument('--hld',default='sc1')
o=ap.parse_args()
open(o.o,'w').write(gen(o))
```
